```python
import torch

def _softmax(x, axis=-1):
    return torch.softmax(x, dim=axis)
def _gelu(x):
    return torch.nn.functional.gelu(x, approximate="tanh")
def _silu(x):
    return torch.nn.functional.silu(x)
def _sigmoid(x):
    return torch.sigmoid(x)
def _layernorm(x, axis=-1, eps=1e-5):
    m = x.mean(dim=axis, keepdim=True)
    v = x.var(dim=axis, keepdim=True, unbiased=False)
    return (x - m) / torch.sqrt(v + eps)
def _scatter_add(tgt, idx, src, axis=0):
    return tgt.clone().index_add_(axis, idx, src)
def _segment_sum(src, seg, n):
    out = torch.zeros((n,) + src.shape[1:], dtype=src.dtype)
    return out.index_add_(0, seg, src)
def _pad(x, pw):
    flat = tuple(v for pair in reversed(pw) for v in pair)
    return torch.nn.functional.pad(x, flat)

kernel_name = 'interleave_layers__linear_kernel_hedgehog__spectral_fnet__prompt'

def setup_inputs():

    _w = (lambda a: (lambda t: t.to(torch.bfloat16) if t.is_floating_point() else t)(torch.as_tensor(a)))
    def _A_setup():
        B, S, D, H = 1, 2048, 576, 32
        Dh = D // H
        return {
            "x": _w((lambda *s: torch.randn(*s, dtype=torch.bfloat16) * 0.4)(B, S, D)),
            "wqkv": _w((lambda *s: torch.randn(*s, dtype=torch.bfloat16) * 1.6)(D, 3 * D)),
            "w_phi": _w((lambda *s: torch.randn(*s, dtype=torch.bfloat16) * 1.6)(H, Dh, Dh) * (Dh ** -0.5)),
            "wo": _w((lambda *s: torch.randn(*s, dtype=torch.bfloat16) * 1.6)(D, D)),
        }
    _A_in = _A_setup()

    def _B_setup():
        B, S, D = 1, 2048, 576
        ns = torch.arange(S)[:, None] * torch.arange(S)[None, :]
        nd = torch.arange(D)[:, None] * torch.arange(D)[None, :]
        Ws_re = torch.cos(-2.0 * torch.pi * ns / S).to(float)
        Ws_im = torch.sin(-2.0 * torch.pi * ns / S).to(float)
        Wd_re = torch.cos(-2.0 * torch.pi * nd / D).to(float)
        Wd_im = torch.sin(-2.0 * torch.pi * nd / D).to(float)
        return {
            "x": _w((lambda *s: torch.randn(*s, dtype=torch.bfloat16) * 0.4)(B, S, D)),
            "dft_seq_re": _w(Ws_re),
            "dft_seq_im": _w(Ws_im),
            "dft_hid_re": _w(Wd_re),
            "dft_hid_im": _w(Wd_im),
        }
    _B_in = _B_setup()

    return {
        "A_x": _A_in["x"],
        "A_wqkv": _A_in["wqkv"],
        "A_w_phi": _A_in["w_phi"],
        "A_wo": _A_in["wo"],
        "B_x": _B_in["x"],
        "B_dft_seq_re": _B_in["dft_seq_re"],
        "B_dft_seq_im": _B_in["dft_seq_im"],
        "B_dft_hid_re": _B_in["dft_hid_re"],
        "B_dft_hid_im": _B_in["dft_hid_im"],
    }

def reference(A_x, A_wqkv, A_w_phi, A_wo, B_x, B_dft_seq_re, B_dft_seq_im, B_dft_hid_re, B_dft_hid_im):
    def _A_ref(x, wqkv, w_phi, wo):
        B, S, D = x.shape
        H = 32; Dh = D // H
        qkv = (lambda x, *d: x.permute(*d))((x @ wqkv).reshape(B, S, 3, H, Dh), 2, 0, 3, 1, 4)
        q, k, v = qkv[0], qkv[1], qkv[2]
        pq = torch.einsum("bhsd,hdf->bhsf", q, w_phi)
        pk = torch.einsum("bhsd,hdf->bhsf", k, w_phi)
        phi_q = torch.concatenate([_softmax(pq, axis=-1), _softmax(-pq, axis=-1)], axis=-1)
        phi_k = torch.concatenate([_softmax(pk, axis=-1), _softmax(-pk, axis=-1)], axis=-1)
        kv = torch.einsum("bhsf,bhsd->bhfd", phi_k, v)
        z  = torch.einsum("bhsf->bhf", phi_k)
        num = torch.einsum("bhqf,bhfd->bhqd", phi_q, kv)
        den = torch.einsum("bhqf,bhf->bhq", phi_q, z)[..., None] + 1e-6
        o = num / den
        return (lambda x, *d: x.permute(*d))(o, 0, 2, 1, 3).reshape(B, S, D) @ wo

    def _B_ref(x, dft_seq_re, dft_seq_im, dft_hid_re, dft_hid_im):
        a = torch.einsum("bsd,ed->bse", x, dft_hid_re)
        b = torch.einsum("bsd,ed->bse", x, dft_hid_im)
        y = torch.einsum("ts,bse->bte", dft_seq_re, a) - torch.einsum("ts,bse->bte", dft_seq_im, b)
        return y

    x = A_x
    x = x + _A_ref(_layernorm(x, axis=-1), A_wqkv, A_w_phi, A_wo)
    x = x + _B_ref(_layernorm(x, axis=-1), B_dft_seq_re, B_dft_seq_im, B_dft_hid_re, B_dft_hid_im)
    x = x + _A_ref(_layernorm(x, axis=-1), A_wqkv, A_w_phi, A_wo)
    x = x + _B_ref(_layernorm(x, axis=-1), B_dft_seq_re, B_dft_seq_im, B_dft_hid_re, B_dft_hid_im)
    return x
```

```python
import re

TRANS = ("v_exp_f32", "v_log_f32", "v_rcp_f32", "v_rsq_f32", "v_sqrt_f32", "v_sin_f32", "v_cos_f32")

_rx_vr = re.compile(r"\bv\[(\d+):(\d+)\]")
_rx_v = re.compile(r"\bv(\d+)\b")
_rx_sr = re.compile(r"\bs\[(\d+):(\d+)\]")
_rx_s = re.compile(r"\bs(\d+)\b")


def _regs(tok, kind):
    out = []
    if kind == 'v':
        r, s = _rx_vr, _rx_v
    else:
        r, s = _rx_sr, _rx_s
    t2 = tok
    for m in r.finditer(tok):
        out += list(range(int(m.group(1)), int(m.group(2)) + 1))
    t2 = r.sub(" ", tok)
    for m in s.finditer(t2):
        out.append(int(m.group(1)))
    return out


def split_ops(rest):
    return [o.strip() for o in rest.split(",")]


def analyze(line):
    s = line.split(";")[0].strip()
    if not s or s.endswith(":") or s.startswith("."):
        return None
    parts = s.split(None, 1)
    op = parts[0]
    rest = parts[1] if len(parts) > 1 else ""
    ops = split_ops(rest)
    info = dict(op=op, kind=None, vdst=[], vsrc=[], sdst=[], ssrc=[], C=[], AB=[], m0w=False, dma=False, nop=0,
                dpp=("dpp" in op or "row_" in rest or "quad_perm" in rest), store_wide=False)
    if op == "s_nop":
        info['kind'] = 'nop'; info['nop'] = int(rest.strip(), 0); return info
    if op.startswith("v_mfma"):
        info['kind'] = 'mfma'
        info['vdst'] = _regs(ops[0], 'v')
        info['AB'] = _regs(ops[1], 'v') + _regs(ops[2], 'v')
        info['C'] = _regs(ops[3], 'v')
        info['vsrc'] = info['AB'] + info['C']
        info['passes'] = 8 if "32x32" in op else 4
        return info
    if op.startswith("v_"):
        info['kind'] = 'trans' if op.split("_e")[0] in TRANS or op in TRANS else 'valu'
        if "permlane" in op:
            info['vdst'] = _regs(ops[0], 'v') + _regs(ops[1], 'v')
            info['vsrc'] = list(info['vdst'])
            info['perm'] = True
            return info
        d = ops[0]
        info['vdst'] = _regs(d, 'v')
        info['sdst'] = _regs(d, 's')
        if 'vcc' in d: info['sdst'].append(-1)
        start = 1
        if len(ops) > 1 and ops[1] == 'vcc' and ("_co_" in op):
            info['sdst'].append(-1); start = 2
        for o in ops[start:]:
            o2 = o.split()[0] if o.split() else ""
            info['vsrc'] += _regs(o2, 'v')
            info['ssrc'] += _regs(o2, 's')
            if o2 == 'vcc': info['ssrc'].append(-1)
        if op.startswith("v_fmac") : info['vsrc'] += info['vdst']
        if op.startswith("v_readfirstlane") or op.startswith("v_readlane"):
            info['rfl'] = True
        return info
    if op.startswith("s_"):
        info['kind'] = 'salu'
        if ops and ops[0] == 'm0': info['m0w'] = True
        return info
    if op.startswith("buffer_") or op.startswith("global_"):
        info['kind'] = 'vmem'
        lds = re.search(r"\blds\b", rest) is not None
        if lds: info['dma'] = True
        toks = [o.split()[0] if o.split() else "" for o in ops]
        if ("load" in op or ("atomic" in op and "sc0" in rest)) and not lds:
            info['vdst'] = _regs(toks[0], 'v')
            for t in toks[1:]:
                info['vsrc'] += _regs(t, 'v'); info['ssrc'] += _regs(t, 's')
            if "atomic" in op: info['vsrc'] += info['vdst']
        else:
            for t in toks:
                info['vsrc'] += _regs(t, 'v'); info['ssrc'] += _regs(t, 's')
            if "store" in op and ("x4" in op or "x3" in op):
                info['store_wide'] = True
                info['wdata'] = _regs(toks[0] if op.startswith("buffer") else toks[1], 'v')
        return info
    if op.startswith("ds_"):
        info['kind'] = 'ds'
        toks = [o.split()[0] if o.split() else "" for o in ops]
        if op.startswith("ds_read") or op.startswith("ds_swizzle") or op.startswith("ds_bpermute") or op.startswith("ds_permute"):
            info['vdst'] = _regs(toks[0], 'v')
            for t in toks[1:]: info['vsrc'] += _regs(t, 'v')
        else:
            for t in toks: info['vsrc'] += _regs(t, 'v')
        return info
    info['kind'] = 'other'
    return info


def lint_fix(lines, verbose=False):
    out = []
    slot = 0
    valu_w = {}
    trans_w = {}
    mfma_w = {}
    mfma_c = {}
    sg_valu_w = {}
    m0_w = -100
    wide_store = {}
    nfix = 0

    for line in lines:
        info = analyze(line)
        if info is None:
            out.append(line); continue
        k = info['kind']
        need = 0

        def req(pslot, ws):
            nonlocal need
            gap = slot - pslot - 1
            if gap < ws:
                need = max(need, ws - gap)

        if k == 'mfma':
            D = tuple(info['vdst'])
            for r in info['vsrc']:
                if r in valu_w: req(valu_w[r], 2)
            for r in info['AB']:
                if r in mfma_w:
                    ps, pp, _ = mfma_w[r]; req(ps, 8 if pp == 4 else 12)
            if info['C']:
                for r in info['C']:
                    if r in mfma_w:
                        ps, pp, dr = mfma_w[r]
                        if tuple(info['C']) == dr and pp == info['passes']:
                            pass
                        else:
                            req(ps, 6 if pp == 4 else 10)
            for r in info['vdst']:
                if r in mfma_w and mfma_w[r][2] != D:
                    ps, pp, _ = mfma_w[r]; req(ps, 8 if pp == 4 else 12)
        elif k in ('valu', 'trans', 'vmem', 'ds'):
            for r in info['vsrc'] + info['vdst']:
                if r in mfma_w:
                    ps, pp, _ = mfma_w[r]; req(ps, 8 if pp == 4 else 12)
            if k in ('valu', 'trans'):
                for r in info['vdst']:
                    if r in mfma_c:
                        ps, pp = mfma_c[r]; req(ps, 3 if pp == 4 else 7)
                    if r in wide_store: req(wide_store[r], 2)
                if k == 'valu':
                    for r in info['vsrc']:
                        if r in trans_w: req(trans_w[r], 1)
                if info.get('perm') or info.get('dpp'):
                    for r in info['vsrc']:
                        if r in valu_w: req(valu_w[r], 2)
                if info.get('rfl'):
                    for r in info['vsrc']:
                        if r in valu_w: req(valu_w[r], 1)
                for r in info['ssrc']:
                    if r in sg_valu_w: req(sg_valu_w[r], 2)
            if k == 'vmem':
                for r in info['ssrc']:
                    if r in sg_valu_w: req(sg_valu_w[r], 5)
                if info['dma']: req(m0_w, 1)
        if need > 0:
            n = need
            while n > 0:
                c = min(n, 16)
                out.append("    s_nop %d" % (c - 1))
                slot += c
                n -= c
            nfix += 1
        out.append(line)
        if k == 'nop':
            slot += info['nop'] + 1
            continue
        if k in ('valu', 'trans'):
            for r in info['vdst']:
                valu_w[r] = slot
                if k == 'trans': trans_w[r] = slot
                else: trans_w.pop(r, None)
                mfma_w.pop(r, None)
            for r in info['sdst']: sg_valu_w[r] = slot
        elif k == 'mfma':
            D = tuple(info['vdst'])
            for r in D:
                mfma_w[r] = (slot, info['passes'], D)
                valu_w.pop(r, None); trans_w.pop(r, None)
            for r in info['C']: mfma_c[r] = (slot, info['passes'])
        elif k in ('vmem', 'ds'):
            for r in info['vdst']:
                valu_w.pop(r, None); trans_w.pop(r, None); mfma_w.pop(r, None)
            if info.get('store_wide'):
                for r in info['wdata']: wide_store[r] = slot
        elif k == 'salu':
            if info['m0w']: m0_w = slot
        slot += 1
    if verbose: print("lint: %d fixes" % nfix)
    return out


class Kern:
    def __init__(self, name):
        self.name = name
        self.L = []
        self.nv = 0
        self.ns = 0
        self.lds = 0

    def __call__(self, s):
        for ln in s.strip("\n").split("\n"):
            ln = ln.strip()
            if ln: self.L.append("    " + ln)

    def label(self, l):
        self.L.append(l + ":")

    def comment(self, c):
        self.L.append("    ; " + c)

    def text(self, nvgpr, nsgpr):
        body = lint_fix(self.L)
        head = [".globl %s" % self.name, ".p2align 8", ".type %s,@function" % self.name, "%s:" % self.name]
        return "\n".join(head + body) + "\n"

    def desc(self, nvgpr, nsgpr):
        acc = (nvgpr + 3) // 4 * 4
        return "\n".join([
            ".p2align 6",
            ".amdhsa_kernel %s" % self.name,
            "  .amdhsa_next_free_vgpr %d" % nvgpr,
            "  .amdhsa_next_free_sgpr %d" % nsgpr,
            "  .amdhsa_accum_offset %d" % acc,
            "  .amdhsa_group_segment_fixed_size 0",
            "  .amdhsa_kernarg_size 96",
            "  .amdhsa_user_sgpr_count 2",
            "  .amdhsa_user_sgpr_kernarg_segment_ptr 1",
            "  .amdhsa_system_sgpr_workgroup_id_x 1",
            ".end_amdhsa_kernel"]) + "\n"


KA = dict(A_x=0, A_wqkv=8, A_w_phi=16, A_wo=24, B_x=32, CR=40, CI=48, WDR=56, WDI=64, OUT=72, DBG=80, WS=88)


def load_kernargs(k, base=4):
    k("s_load_dwordx16 s[%d:%d], s[0:1], 0" % (base, base + 15))
    k("s_load_dwordx8 s[%d:%d], s[0:1], 64" % (base + 16, base + 23))
    return {n: base + off // 4 for n, off in KA.items()}


def srd(k, d, ptr, off, size):
    if off:
        k("s_add_u32 s%d, s%d, 0x%x" % (d, ptr, off))
        k("s_addc_u32 s%d, s%d, 0" % (d + 1, ptr + 1))
    else:
        k("s_mov_b32 s%d, s%d" % (d, ptr))
        k("s_mov_b32 s%d, s%d" % (d + 1, ptr + 1))
    k("s_and_b32 s%d, s%d, 0xffff" % (d + 1, d + 1))
    k("s_mov_b32 s%d, 0x%x" % (d + 2, size))
    k("s_mov_b32 s%d, 0x00020000" % (d + 3))
```

```python
from asmlib import *
import layout as Lw

class Gemm:
    def __init__(self, name, BM, BN, WM, WN, NS, nwg):
        self.k = Kern(name)
        self.name = name
        self.BM, self.BN, self.WM, self.WN, self.NS, self.nwg = BM, BN, WM, WN, NS, nwg
        assert WM * WN == 4
        self.TM, self.TN = BM // WM // 16, BN // WN // 16
        assert self.TM * WM * 16 == BM and self.TN * WN * 16 == BN
        assert BM % 32 == 0 and BN % 32 == 0
        self.DA, self.DB = BM // 32, BN // 32
        self.STG = (BM + BN) * 128
        v = 2
        self.vDA = v; v += self.DA
        self.vDB = v; v += self.DB
        self.vFA = v; v += 2
        self.vFB = v; v += 2
        self.vCA = v; v += 2
        self.vCB = v; v += 2
        v = (v + 3) // 4 * 4
        self.fA = v; v += self.TM * 4 * 2
        self.fB = v; v += self.TN * 4 * 2
        self.acc = v; v += self.TM * self.TN * 4
        self.vfree = v
        self.P = None

    def accr(self, tb, tn):
        return self.acc + (tb * self.TN + tn) * 4

    def begin(self):
        k = self.k
        k("s_cmp_ge_u32 s2, %d" % self.nwg)
        k("s_cbranch_scc1 L_%s_end" % self.name)
        self.P = load_kernargs(k, 4)
        k("v_lshrrev_b32 v1, 6, v0")
        k("s_nop 0")
        k("v_readfirstlane_b32 s36, v1")
        k("v_and_b32 v1, 63, v0")
        k("s_lshl_b32 s37, s36, 10")
        WM, WN, TM, TN, BM = self.WM, self.WN, self.TM, self.TN, self.BM
        t = self.vfree
        k("v_and_b32 v%d, 15, v1" % t)
        k("v_lshlrev_b32 v%d, 7, v%d" % (t, t))
        k("v_lshrrev_b32 v%d, 4, v1" % (t + 1))
        k("v_and_b32 v%d, 7, v1" % (t + 2))
        k("v_xor_b32 v%d, v%d, v%d" % (t + 1, t + 1, t + 2))
        k("v_lshl_add_u32 v%d, v%d, 4, v%d" % (t + 3, t + 1, t))
        k("v_xor_b32 v%d, 64, v%d" % (t + 4, t + 3))
        if WN == 1:
            k("s_mov_b32 s38, s36"); k("s_mov_b32 s39, 0")
        elif WN == 2:
            k("s_lshr_b32 s38, s36, 1"); k("s_and_b32 s39, s36, 1")
        else:
            k("s_mov_b32 s38, 0"); k("s_mov_b32 s39, s36")
        k("s_mul_i32 s40, s38, %d" % (TM * 2048))
        k("s_mul_i32 s41, s39, %d" % (TN * 2048))
        k("s_add_u32 s41, s41, %d" % (BM * 128))
        k("v_add_u32 v%d, s40, v%d" % (self.vFA, t + 3))
        k("v_add_u32 v%d, s40, v%d" % (self.vFA + 1, t + 4))
        k("v_add_u32 v%d, s41, v%d" % (self.vFB, t + 3))
        k("v_add_u32 v%d, s41, v%d" % (self.vFB + 1, t + 4))
        k("s_mov_b32 s42, s38"); k("s_mov_b32 s43, s39")

    def dma_offsets(self, s_m0, lda, s_n0, ldb, bmap=None):
        k = self.k
        t = self.vfree
        k("v_lshrrev_b32 v%d, 3, v1" % t)
        k("v_and_b32 v%d, 7, v1" % (t + 1))
        k("v_xor_b32 v%d, v%d, v%d" % (t + 1, t + 1, t))
        k("v_lshlrev_b32 v%d, 4, v%d" % (t + 1, t + 1))
        k("s_lshl_b32 s44, s36, 3")
        k("v_add_u32 v%d, s44, v%d" % (t, t))
        k("s_mov_b32 s45, %d" % lda)
        k("s_mov_b32 s46, %d" % ldb)
        for i in range(self.DA):
            k("v_add_u32 v%d, %d, v%d" % (t + 2, 32 * i, t))
            k("v_add_u32 v%d, %s, v%d" % (t + 2, s_m0, t + 2))
            k("v_mul_lo_u32 v%d, v%d, s45" % (t + 2, t + 2))
            k("v_add_u32 v%d, v%d, v%d" % (self.vDA + i, t + 2, t + 1))
        for i in range(self.DB):
            k("v_add_u32 v%d, %d, v%d" % (t + 2, 32 * i, t))
            if bmap is not None:
                bmap(k, t + 2)
            else:
                k("v_add_u32 v%d, %s, v%d" % (t + 2, s_n0, t + 2))
            k("v_mul_lo_u32 v%d, v%d, s46" % (t + 2, t + 2))
            k("v_add_u32 v%d, v%d, v%d" % (self.vDB + i, t + 2, t + 1))

    def zero_acc(self):
        for r in range(self.acc, self.acc + self.TM * self.TN * 4):
            self.k("v_mov_b32 v%d, 0" % r)

    def issue(self, buf, srdA, srdB, sKA="s47", sKB="s48"):
        k = self.k
        for i in range(self.DA):
            k("s_add_u32 m0, s37, %d" % (buf * self.STG + 4096 * i))
            k("buffer_load_dwordx4 v%d, s[%d:%d], %s offen lds" % (self.vDA + i, srdA, srdA + 3, sKA))
        for i in range(self.DB):
            k("s_add_u32 m0, s37, %d" % (buf * self.STG + self.BM * 128 + 4096 * i))
            k("buffer_load_dwordx4 v%d, s[%d:%d], %s offen lds" % (self.vDB + i, srdB, srdB + 3, sKB))
        k("s_add_u32 %s, %s, 128" % (sKA, sKA))
        k("s_add_u32 %s, %s, 128" % (sKB, sKB))

    def compute(self, buf):
        k = self.k
        TM, TN = self.TM, self.TN
        base = buf * self.STG
        if base:
            k("v_add_u32 v%d, %d, v%d" % (self.vCA, base, self.vFA))
            k("v_add_u32 v%d, %d, v%d" % (self.vCA + 1, base, self.vFA + 1))
            k("v_add_u32 v%d, %d, v%d" % (self.vCB, base, self.vFB))
            k("v_add_u32 v%d, %d, v%d" % (self.vCB + 1, base, self.vFB + 1))
            aA, aB = self.vCA, self.vCB
        else:
            aA, aB = self.vFA, self.vFB
        for j in range(2):
            for tb in range(TM):
                r = self.fA + (tb * 2 + j) * 4
                k("ds_read_b128 v[%d:%d], v%d offset:%d" % (r, r + 3, aA + j, tb * 2048))
            for tn in range(TN):
                r = self.fB + (tn * 2 + j) * 4
                k("ds_read_b128 v[%d:%d], v%d offset:%d" % (r, r + 3, aB + j, tn * 2048))
        for j in range(2):
            k("s_waitcnt lgkmcnt(%d)" % ((TM + TN) if j == 0 else 0))
            for tb in range(TM):
                for tn in range(TN):
                    a = self.fA + (tb * 2 + j) * 4
                    b = self.fB + (tn * 2 + j) * 4
                    c = self.accr(tb, tn)
                    k("v_mfma_f32_16x16x32_bf16 v[%d:%d], v[%d:%d], v[%d:%d], v[%d:%d]" % (c, c + 3, a, a + 3, b, b + 3, c, c + 3))

    def mainloop(self, T, srdA, srdB, tag):
        k = self.k
        NS = self.NS
        D = self.DA + self.DB
        assert (NS - 2) * D <= 63
        for s in range(NS - 1):
            self.issue(s, srdA, srdB)
        n_issue = T - (NS - 1)
        n_loop = n_issue // NS
        s = 0
        if n_loop > 0:
            k("s_mov_b32 s49, %d" % n_loop)
            k.label("L_%s_loop" % tag)
            for u in range(NS):
                k("s_waitcnt vmcnt(%d)" % ((NS - 2) * D))
                k("s_barrier")
                self.issue((u + NS - 1) % NS, srdA, srdB)
                self.compute(u)
            k("s_sub_u32 s49, s49, 1")
            k("s_cmp_lg_u32 s49, 0")
            k("s_cbranch_scc1 L_%s_loop" % tag)
            s = n_loop * NS
        while s < T:
            rem_after = min(s + NS - 2, T - 1) - s
            k("s_waitcnt vmcnt(%d)" % (rem_after * D))
            k("s_barrier")
            if s + NS - 1 < T:
                self.issue((s + NS - 1) % NS, srdA, srdB)
            self.compute(s % NS)
            s += 1

    def end(self):
        self.k.label("L_%s_end" % self.name)
        self.k("s_endpgm")
```

```python
import sys
sys.path.insert(0, "dev")
from asmlib import *
import layout as Lw

XBYTES = 2048 * 576 * 2


def k_prep():
    k = Kern("prep_kernel")
    k("s_cmp_ge_u32 s2, 256")
    k("s_cbranch_scc1 L_prep_end")
    P = load_kernargs(k, 4)
    k("v_lshrrev_b32 v1, 6, v0")
    k("v_and_b32 v2, 63, v0")
    k("s_nop 0")
    k("v_readfirstlane_b32 s28, v1")
    k("s_lshl_b32 s29, s2, 2")
    k("s_add_u32 s28, s28, s29")
    k("s_waitcnt lgkmcnt(0)")
    srd(k, 32, P['A_wqkv'], 0, 576 * 1728 * 2)
    srd(k, 36, P['A_wo'], 0, 576 * 576 * 2)
    srd(k, 40, P['WS'], 0, Lw.WS_SIZE)
    srd(k, 44, P['A_w_phi'], 0, 32 * 18 * 18 * 2)

    def transpose(tag, srd_in, ncols, ngroups, ntasks, ws_off, magic):
        k("s_mov_b32 s30, s28")
        k.label("L_%s_loop" % tag)
        k("s_cmp_ge_u32 s30, %d" % ntasks)
        k("s_cbranch_scc1 L_%s_done" % tag)
        k("s_mov_b32 s31, 0x%x" % magic)
        k("s_mul_hi_u32 s48, s30, s31")
        k("s_mul_i32 s49, s48, %d" % ngroups)
        k("s_sub_u32 s49, s30, s49")
        k("s_lshl_b32 s50, s49, 7")
        k("v_lshlrev_b32 v3, 1, v2")
        k("v_add_u32 v3, s50, v3")
        k("s_mul_i32 s51, s48, %d" % (8 * ncols * 2))
        for j in range(8):
            k("buffer_load_ushort v%d, v3, s[%d:%d], s51 offen" % (8 + j, srd_in, srd_in + 3))
            k("s_add_u32 s51, s51, %d" % (ncols * 2))
        k("v_lshrrev_b32 v4, 1, v3")
        k("s_movk_i32 s52, 1152")
        k("v_mul_lo_u32 v4, v4, s52")
        k("s_lshl_b32 s53, s48, 4")
        k("s_add_u32 s53, s53, 0x%x" % ws_off)
        k("s_waitcnt vmcnt(0)")
        for j in range(4):
            k("v_lshl_or_b32 v%d, v%d, 16, v%d" % (16 + j, 9 + 2 * j, 8 + 2 * j))
        k("buffer_store_dwordx4 v[16:19], v4, s[40:43], s53 offen")
        k("s_add_u32 s30, s30, 1024")
        k("s_branch L_%s_loop" % tag)
        k.label("L_%s_done" % tag)

    transpose("wq", 32, 1728, 27, 27 * 72, Lw.WS_WQKVT, (1 << 32) // 27 + 1)
    transpose("wo", 36, 576, 9, 9 * 72, Lw.WS_WOT, (1 << 32) // 9 + 1)

    k("s_cmp_ge_u32 s2, 4")
    k("s_cbranch_scc1 L_phi_done")
    k("s_lshl_b32 s30, s2, 8")
    k("v_add_u32 v3, s30, v0")
    k("v_lshrrev_b32 v4, 5, v3")
    k("v_and_b32 v5, 31, v3")
    k("s_movk_i32 s31, 648")
    k("v_mul_lo_u32 v6, v4, s31")
    k("v_lshl_add_u32 v6, v5, 1, v6")
    for j in range(18):
        k("v_mov_b32 v%d, 0" % (8 + j))
    k("v_cmp_gt_u32 vcc, 18, v5")
    k("s_and_saveexec_b64 s[48:49], vcc")
    k("s_cbranch_execz L_phi_skip")
    for d in range(18):
        k("buffer_load_ushort v%d, v6, s[44:47], 0 offen offset:%d" % (8 + d, d * 36))
    k.label("L_phi_skip")
    k("s_mov_b64 exec, s[48:49]")
    k("s_waitcnt vmcnt(0)")
    for j in range(9):
        k("v_lshl_or_b32 v%d, v%d, 16, v%d" % (32 + j, 9 + 2 * j, 8 + 2 * j))
    for j in range(9, 16):
        k("v_mov_b32 v%d, 0" % (32 + j))
    k("v_lshlrev_b32 v7, 6, v3")
    k("s_mov_b32 s31, 0x%x" % Lw.WS_WPHIT)
    for j in range(4):
        k("buffer_store_dwordx4 v[%d:%d], v7, s[40:43], s31 offen offset:%d" % (32 + 4 * j, 35 + 4 * j, 16 * j))
    k.label("L_phi_done")

    k("s_cmp_ge_u32 s28, 448")
    k("s_cbranch_scc1 L_prep_end")
    k("s_mov_b32 s31, 0x%x" % ((1 << 32) // 14 + 1))
    k("s_mul_hi_u32 s48, s28, s31")
    k("s_mul_i32 s49, s48, 14")
    k("s_sub_u32 s49, s28, s49")
    k("s_lshl_b32 s50, s48, 5")
    k("s_add_u32 s50, s50, s49")
    k("s_add_u32 s50, s50, 18")
    k("s_lshl_b32 s50, s50, 12")
    k("s_add_u32 s50, s50, 0x%x" % Lw.WS_VT)
    k("s_cmp_eq_u32 s49, 0")
    k("s_cselect_b32 s51, 0x3f803f80, 0")
    for j in range(4):
        k("v_mov_b32 v%d, s51" % (16 + j))
    k("v_lshlrev_b32 v3, 4, v2")
    for j in range(4):
        k("buffer_store_dwordx4 v[16:19], v3, s[40:43], s50 offen offset:%d" % (1024 * j))
    k.label("L_prep_end")
    k("s_endpgm")
    return k, 64, 64


def emit_ln(k, vOff, srd_src, soff_src, srd_dst, soff_dst, vb):
    raw = vb
    f = vb + 36
    t0 = vb + 108
    for i in range(9):
        k("buffer_load_dwordx4 v[%d:%d], v%d, s[%d:%d], %s offen offset:%d" % (raw + 4 * i, raw + 4 * i + 3, vOff, srd_src, srd_src + 3, soff_src, 128 * i))
    k("s_waitcnt vmcnt(0)")
    for i in range(36):
        k("v_lshlrev_b32 v%d, 16, v%d" % (f + 2 * i, raw + i))
        k("v_and_b32 v%d, 0xffff0000, v%d" % (f + 2 * i + 1, raw + i))
    s1, s2 = t0, t0 + 1
    k("v_add_f32 v%d, v%d, v%d" % (s1, f, f + 1))
    for i in range(2, 72):
        k("v_add_f32 v%d, v%d, v%d" % (s1, s1, f + i))

    def red8(r):
        k("v_add_f32_dpp v%d, v%d, v%d quad_perm:[1,0,3,2] row_mask:0xf bank_mask:0xf" % (r, r, r))
        k("v_add_f32_dpp v%d, v%d, v%d quad_perm:[2,3,0,1] row_mask:0xf bank_mask:0xf" % (r, r, r))
        k("v_add_f32_dpp v%d, v%d, v%d row_half_mirror row_mask:0xf bank_mask:0xf" % (r, r, r))
    red8(s1)
    mean = t0 + 2
    k("v_mul_f32 v%d, 0x%08x, v%d" % (mean, 0x3ae38e39, s1))
    dd = t0 + 3
    k("v_sub_f32 v%d, v%d, v%d" % (dd, f, mean))
    k("v_mul_f32 v%d, v%d, v%d" % (s2, dd, dd))
    for i in range(1, 72):
        k("v_sub_f32 v%d, v%d, v%d" % (dd, f + i, mean))
        k("v_fmac_f32 v%d, v%d, v%d" % (s2, dd, dd))
    red8(s2)
    var = t0 + 4
    k("v_mul_f32 v%d, 0x%08x, v%d" % (var, 0x3ae38e39, s2))
    mb, vb16 = t0 + 5, t0 + 6
    k("v_cvt_pk_bf16_f32 v%d, v%d, v%d" % (mb, mean, var))
    k("v_and_b32 v%d, 0xffff0000, v%d" % (vb16, mb))
    k("v_lshlrev_b32 v%d, 16, v%d" % (mb, mb))
    k("v_add_f32 v%d, 0x3727c5ac, v%d" % (vb16, vb16))
    k("v_cvt_pk_bf16_f32 v%d, v%d, v%d" % (vb16, vb16, vb16))
    k("v_lshlrev_b32 v%d, 16, v%d" % (vb16, vb16))
    k("v_sqrt_f32 v%d, v%d" % (vb16, vb16))
    k("v_cvt_pk_bf16_f32 v%d, v%d, v%d" % (vb16, vb16, vb16))
    k("v_lshlrev_b32 v%d, 16, v%d" % (vb16, vb16))
    rc = t0 + 7
    k("v_rcp_f32 v%d, v%d" % (rc, vb16))
    e = t0 + 8
    for i in range(36):
        for h in range(2):
            x = f + 2 * i + h
            k("v_sub_f32 v%d, v%d, v%d" % (x, x, mb))
        k("v_cvt_pk_bf16_f32 v%d, v%d, v%d" % (raw + i, f + 2 * i, f + 2 * i + 1))
        k("v_lshlrev_b32 v%d, 16, v%d" % (f + 2 * i, raw + i))
        k("v_and_b32 v%d, 0xffff0000, v%d" % (f + 2 * i + 1, raw + i))
        for h in range(2):
            x = f + 2 * i + h
            q = t0 + 9 + h
            k("v_mul_f32 v%d, v%d, v%d" % (q, x, rc))
            k("v_fma_f32 v%d, -v%d, v%d, v%d" % (e + h * 0 + 3 + h, q, vb16, x))
            k("v_fma_f32 v%d, v%d, v%d, v%d" % (x, e + 3 + h, rc, q))
        k("v_cvt_pk_bf16_f32 v%d, v%d, v%d" % (raw + i, f + 2 * i, f + 2 * i + 1))
    for i in range(9):
        k("buffer_store_dwordx4 v[%d:%d], v%d, s[%d:%d], %s offen offset:%d" % (raw + 4 * i, raw + 4 * i + 3, vOff, srd_dst, srd_dst + 3, soff_dst, 128 * i))


def k_ln(name, src):
    k = Kern(name)
    k("s_cmp_ge_u32 s2, 256")
    k("s_cbranch_scc1 L_%s_end" % name)
    P = load_kernargs(k, 4)
    k("v_lshrrev_b32 v1, 6, v0")
    k("v_and_b32 v2, 63, v0")
    k("s_lshl_b32 s28, s2, 3")
    k("v_lshrrev_b32 v3, 3, v0")
    k("v_add_u32 v3, s28, v3")
    k("s_movk_i32 s29, 1152")
    k("v_mul_lo_u32 v3, v3, s29")
    k("v_and_b32 v4, 7, v0")
    k("v_lshl_add_u32 v3, v4, 4, v3")
    k("s_waitcnt lgkmcnt(0)")
    if src[0] == 'in':
        srd(k, 32, P[src[1]], 0, XBYTES)
    else:
        srd(k, 32, P['WS'], src[1], XBYTES)
    srd(k, 36, P['WS'], Lw.WS_XN, XBYTES)
    emit_ln(k, 3, 32, "0", 36, "0", 8)
    k.label("L_%s_end" % name)
    k("s_endpgm")
    return k, 144, 64


def build(kernels, launches):
    hdr = []
    for (name, grid, block, lds) in launches:
        hdr.append("; @launch kernel=%s grid=(%d,1,1) block=(%d,1,1) lds=%d" % (name, grid, block, lds))
    txt = "\n".join(hdr) + "\n"
    txt += '.amdgcn_target "amdgcn-amd-amdhsa--gfx950"\n.text\n'
    for (k, nv, ns) in kernels:
        txt += k.text(nv, ns)
    txt += '.section .rodata,"a"\n'
    for (k, nv, ns) in kernels:
        txt += k.desc(nv, ns)
    return txt


if __name__ == "__main__":
    kernels = [k_prep(), k_ln("ln0_kernel", ('in', 'A_x'))]
    launches = [("prep_kernel", 256, 256, 0), ("ln0_kernel", 64, 256, 0)]
    out = sys.argv[1] if len(sys.argv) > 1 else "out.s"
    open(out, "w").write(build(kernels, launches))
    print("wrote", out)
```

```python
from gemm import *

XBYTES = 2048 * 576 * 2
LOG2E = 0x3fb8aa3b
NINF = 0xff800000


def bf16r(k, r, t=None):
    k("v_cvt_pk_bf16_f32 v%d, v%d, v%d" % (r, r, r))
    k("v_lshlrev_b32 v%d, 16, v%d" % (r, r))


def k_qkv(name):
    g = Gemm(name, 256, 64, 4, 1, 3, 256)
    k = g.k
    g.begin()
    P = g.P
    k("s_and_b32 s51, s2, 7")
    k("s_lshr_b32 s52, s2, 3")
    k("s_lshl_b32 s53, s51, 8")
    k("s_mul_i32 s54, s52, 18")
    k("s_waitcnt lgkmcnt(0)")
    srd(k, 28, P['WS'], Lw.WS_XN, XBYTES)
    srd(k, 32, P['WS'], Lw.WS_WQKVT, 1728 * 576 * 2)

    def bmap(kk, v):
        t = v + 1
        kk("v_cmp_le_u32 vcc, 18, v%d" % v)
        kk("v_cndmask_b32 v%d, 0, v%d, vcc" % (t, g.vfree + 7))
        kk("v_add_u32 v%d, v%d, v%d" % (t, t, v))
        kk("v_cmp_le_u32 vcc, 36, v%d" % v)
        kk("v_cndmask_b32 v%d, 0, v%d, vcc" % (t + 1, g.vfree + 7))
        kk("v_add_u32 v%d, v%d, v%d" % (t, t, t + 1))
        kk("v_add_u32 v%d, s54, v%d" % (t, t))
        kk("v_cmp_gt_u32 vcc, 54, v%d" % v)
        kk("v_cndmask_b32 v%d, 0, v%d, vcc" % (v, t))
    k("v_mov_b32 v%d, 558" % (g.vfree + 7))
    g.dma_offsets("s53", 1152, None, 1152, bmap)
    g.zero_acc()
    k("s_mov_b32 s47, 0"); k("s_mov_b32 s48, 0")
    g.mainloop(9, 28, 32, name)
    srd(k, 28, P['WS'], 0, Lw.WS_SIZE)
    t = g.vfree
    vc, vd, vt, vq, vv = t + 1, t + 2, t + 3, t + 4, t + 5
    t = t + 1
    k("v_lshrrev_b32 v%d, 4, v1" % vt)
    k("v_lshlrev_b32 v%d, 2, v%d" % (vt, vt))
    k("s_lshl_b32 s55, s36, 6")
    k("s_add_u32 s55, s55, s53")
    k("v_add_u32 v%d, s55, v%d" % (vt, vt))
    k("s_lshl_b32 s56, s52, 11")
    k("s_lshl_b32 s57, s52, 5")
    for tn in range(4):
        k("v_and_b32 v%d, 15, v1" % vc)
        if tn: k("v_add_u32 v%d, %d, v%d" % (vc, 16 * tn, vc))
        k("v_cmp_le_u32 vcc, 18, v%d" % vc)
        k("v_cndmask_b32 v%d, 0, 18, vcc" % vd)
        k("v_sub_u32 v%d, v%d, v%d" % (vd, vc, vd))
        k("v_mov_b32 v%d, 0x%x" % (vq, Lw.WS_Q))
        k("v_mov_b32 v%d, 0x%x" % (vv, Lw.WS_K))
        k("v_cndmask_b32 v%d, v%d, v%d, vcc" % (vq, vq, vv))
        k("v_cmp_le_u32 vcc, 36, v%d" % vc)
        k("v_cndmask_b32 v%d, 0, 18, vcc" % vv)
        k("v_sub_u32 v%d, v%d, v%d" % (vd, vd, vv))
        k("v_add_u32 v%d, s56, v%d" % (vv, vt))
        k("v_lshl_add_u32 v%d, v%d, 6, v%d" % (vq, vv, vq))
        k("v_lshl_add_u32 v%d, v%d, 1, v%d" % (vq, vd, vq))
        k("v_add_u32 v%d, s57, v%d" % (vv, vd))
        k("v_lshlrev_b32 v%d, 12, v%d" % (vv, vv))
        k("v_lshl_add_u32 v%d, v%d, 1, v%d" % (vv, vt, vv))
        k("v_add_u32 v%d, 0x%x, v%d" % (vv, Lw.WS_VT, vv))
        k("v_cmp_gt_u32 s[58:59], 36, v%d" % vc)
        k("v_cmp_le_u32 vcc, 36, v%d" % vc)
        k("v_cmp_gt_u32 s[60:61], 54, v%d" % vc)
        k("s_and_b64 s[60:61], s[60:61], vcc")
        for tb in range(4):
            c = g.accr(tb, tn)
            k("v_cvt_pk_bf16_f32 v%d, v%d, v%d" % (t + 5, c, c + 1))
            k("v_cvt_pk_bf16_f32 v%d, v%d, v%d" % (t + 6, c + 2, c + 3))
            k("v_lshrrev_b32 v%d, 16, v%d" % (t + 7, t + 5))
            k("v_lshrrev_b32 v%d, 16, v%d" % (t + 8, t + 6))
            k("s_mov_b64 exec, s[58:59]")
            for r, reg in enumerate((t + 5, t + 7, t + 6, t + 8)):
                k("buffer_store_short v%d, v%d, s[28:31], 0 offen offset:%d" % (reg, vq, (16 * tb + r) * 64))
            k("s_mov_b64 exec, s[60:61]")
            k("buffer_store_dwordx2 v[%d:%d], v%d, s[28:31], 0 offen offset:%d" % (t + 5, t + 6, vv, 32 * tb))
            k("s_mov_b64 exec, -1")
    g.end()
    return g.k, g.vfree + 14, 64, g.NS * g.STG


def xg_reduce(k, x, t, op):
    k("v_mov_b32 v%d, v%d" % (t, x))
    k("v_permlane16_swap_b32 v%d, v%d" % (x, t))
    k("%s v%d, v%d, v%d" % (op, x, x, t))
    k("v_mov_b32 v%d, v%d" % (t, x))
    k("v_permlane32_swap_b32 v%d, v%d" % (x, t))
    k("%s v%d, v%d, v%d" % (op, x, x, t))


def row16_reduce(k, x, op):
    for n in (8, 4, 2, 1):
        k("%s_dpp v%d, v%d, v%d row_ror:%d row_mask:0xf bank_mask:0xf" % (op, x, x, x, n))


def attn_common(k, name):
    k("s_cmp_ge_u32 s2, 256")
    k("s_cbranch_scc1 L_%s_end" % name)
    P = load_kernargs(k, 4)
    k("v_lshrrev_b32 v1, 6, v0")
    k("s_nop 0")
    k("v_readfirstlane_b32 s36, v1")
    k("v_and_b32 v1, 63, v0")
    k("v_and_b32 v2, 15, v1")
    k("v_lshrrev_b32 v3, 4, v1")
    k("s_and_b32 s51, s2, 7")
    k("s_lshr_b32 s52, s2, 3")
    k("s_lshl_b32 s53, s51, 8")
    k("s_lshl_b32 s54, s36, 6")
    k("s_add_u32 s53, s53, s54")
    k("s_waitcnt lgkmcnt(0)")
    srd(k, 28, P['WS'], 0, Lw.WS_SIZE)
    return P


def k_kv(name):
    k = Kern(name)
    P = attn_common(k, name)
    k("s_lshl_b32 s55, s52, 11")
    k("v_lshlrev_b32 v4, 6, v2")
    k("v_lshl_add_u32 v4, v3, 4, v4")
    k("s_add_u32 s55, s55, 0x%x" % Lw.WS_WPHIT)
    k("buffer_load_dwordx4 v[8:11], v4, s[28:31], s55 offen")
    k("buffer_load_dwordx4 v[12:15], v4, s[28:31], s55 offen offset:1024")
    k("v_cmp_gt_u32 s[56:57], 2, v2")
    k("v_lshrrev_b32 v5, 2, v2")
    k("v_lshlrev_b32 v5, 3, v5")
    k("v_and_b32 v6, 3, v2")
    k("v_add_u32 v5, v5, v6")
    k("v_lshlrev_b32 v5, 6, v5")
    k("v_lshl_add_u32 v5, v3, 4, v5")
    k("v_lshlrev_b32 v6, 12, v2")
    k("v_lshl_add_u32 v6, v3, 4, v6")
    acc = 16
    for i in range(32): k("v_mov_b32 v%d, 0" % (acc + i))
    kP, kQ, vB0, vB1 = 48, 52, 56, 60
    pk = 64
    ph = 80
    T = 96
    for grp in range(2):
        k("s_lshl_b32 s55, s52, 11")
        k("s_add_u32 s55, s55, s53")
        k("s_add_u32 s55, s55, %d" % (32 * grp))
        k("s_lshl_b32 s55, s55, 6")
        k("s_add_u32 s55, s55, 0x%x" % Lw.WS_K)
        k("buffer_load_dwordx4 v[%d:%d], v5, s[28:31], s55 offen" % (kP, kP + 3))
        k("buffer_load_dwordx4 v[%d:%d], v5, s[28:31], s55 offen offset:256" % (kQ, kQ + 3))
        k("s_lshl_b32 s58, s52, 17")
        k("s_add_u32 s59, s53, %d" % (32 * grp))
        k("s_lshl_b32 s59, s59, 1")
        k("s_add_u32 s58, s58, s59")
        k("s_add_u32 s58, s58, 0x%x" % Lw.WS_VT)
        k("buffer_load_dwordx4 v[%d:%d], v6, s[28:31], s58 offen" % (vB0, vB0 + 3))
        k("s_add_u32 s58, s58, 65536")
        k("buffer_load_dwordx4 v[%d:%d], v6, s[28:31], s58 offen" % (vB1, vB1 + 3))
        k("s_waitcnt vmcnt(2)")
        for bi, (kf, pb) in enumerate(((kP, pk), (kQ, pk + 8))):
            for blk in range(2):
                w = 8 + 4 * blk
                d = pb + 4 * blk
                k("v_mfma_f32_16x16x32_bf16 v[%d:%d], v[%d:%d], v[%d:%d], 0" % (d, d + 3, kf, kf + 3, w, w + 3))
        for i in range(16): bf16r(k, pk + i)
        for sign in range(2):
            outs = []
            for row in range(8):
                x0 = pk + (row // 4) * 8 + (row % 4)
                x1 = x0 + 4
                a, b, m, s = T + row * 4, T + row * 4 + 1, T + row * 4 + 2, T + row * 4 + 3
                if sign == 0:
                    k("v_mov_b32 v%d, v%d" % (a, x0))
                    k("v_mov_b32 v%d, 0x%x" % (b, NINF))
                    k("v_cndmask_b32 v%d, v%d, v%d, s[56:57]" % (b, b, x1))
                else:
                    k("v_sub_f32 v%d, 0, v%d" % (a, x0))
                    k("v_sub_f32 v%d, 0, v%d" % (m, x1))
                    k("v_mov_b32 v%d, 0x%x" % (b, NINF))
                    k("v_cndmask_b32 v%d, v%d, v%d, s[56:57]" % (b, b, m))
                k("v_max_f32 v%d, v%d, v%d" % (m, a, b))
            for n in (8, 4, 2, 1):
                for row in range(8):
                    m = T + row * 4 + 2
                    k("v_max_f32_dpp v%d, v%d, v%d row_ror:%d row_mask:0xf bank_mask:0xf" % (m, m, m, n))
            for row in range(8):
                a, b, m, s = T + row * 4, T + row * 4 + 1, T + row * 4 + 2, T + row * 4 + 3
                k("v_sub_f32 v%d, v%d, v%d" % (a, a, m))
                k("v_sub_f32 v%d, v%d, v%d" % (b, b, m))
                k("v_mul_f32 v%d, 0x%x, v%d" % (a, LOG2E, a))
                k("v_mul_f32 v%d, 0x%x, v%d" % (b, LOG2E, b))
                k("v_exp_f32 v%d, v%d" % (a, a))
                k("v_exp_f32 v%d, v%d" % (b, b))
                k("v_add_f32 v%d, v%d, v%d" % (s, a, b))
            for n in (8, 4, 2, 1):
                for row in range(8):
                    s = T + row * 4 + 3
                    k("v_add_f32_dpp v%d, v%d, v%d row_ror:%d row_mask:0xf bank_mask:0xf" % (s, s, s, n))
            for row in range(8):
                a, b, m, s = T + row * 4, T + row * 4 + 1, T + row * 4 + 2, T + row * 4 + 3
                k("v_rcp_f32 v%d, v%d" % (s, s))
                k("v_mul_f32 v%d, v%d, v%d" % (a, a, s))
                k("v_mul_f32 v%d, v%d, v%d" % (b, b, s))
            for blk in range(2):
                f = ph + sign * 8 + blk * 4
                for j in range(4):
                    r0 = T + (2 * j) * 4 + blk
                    r1 = T + (2 * j + 1) * 4 + blk
                    k("v_cvt_pk_bf16_f32 v%d, v%d, v%d" % (f + j, r0, r1))
        k("s_waitcnt vmcnt(0)")
        for fb in range(4):
            for db in range(2):
                a = ph + fb * 4
                b = vB0 + db * 4
                c = acc + (fb * 2 + db) * 4
                k("v_mfma_f32_16x16x32_bf16 v[%d:%d], v[%d:%d], v[%d:%d], v[%d:%d]" % (c, c + 3, a, a + 3, b, b + 3, c, c + 3))
    k("v_lshlrev_b32 v4, 2, v1")
    k("s_lshl_b32 s55, s36, 13")
    k("v_add_u32 v4, s55, v4")
    for i in range(32):
        k("ds_write_b32 v4, v%d offset:%d" % (acc + i, i * 256))
    k("s_waitcnt lgkmcnt(0)")
    k("s_barrier")
    k("v_lshlrev_b32 v4, 2, v1")
    k("s_lshl_b32 s55, s36, 11")
    k("v_add_u32 v4, s55, v4")
    for i in range(8):
        for w in range(4):
            k("ds_read_b32 v%d, v4 offset:%d" % (T + i * 4 + w, w * 8192 + i * 256))
    k("s_waitcnt lgkmcnt(0)")
    for i in range(8):
        k("v_add_f32 v%d, v%d, v%d" % (T + i * 4, T + i * 4, T + i * 4 + 1))
        k("v_add_f32 v%d, v%d, v%d" % (T + i * 4 + 2, T + i * 4 + 2, T + i * 4 + 3))
        k("v_add_f32 v%d, v%d, v%d" % (T + i * 4, T + i * 4, T + i * 4 + 2))
    k("s_lshl_b32 s55, s2, 13")
    k("s_add_u32 s55, s55, 0x%x" % Lw.WS_KVP)
    k("s_lshl_b32 s58, s36, 11")
    k("s_add_u32 s55, s55, s58")
    k("v_lshlrev_b32 v4, 2, v1")
    for i in range(8):
        k("buffer_store_dword v%d, v4, s[28:31], s55 offen offset:%d sc0 sc1" % (T + i * 4, i * 256))
    k("s_waitcnt vmcnt(0)")
    k("s_barrier")
    srd(k, 32, P['DBG'], 0, 256)
    k("s_cmp_lg_u32 s36, 0")
    k("s_cbranch_scc1 L_%s_skipatom" % name)
    k("v_mov_b32 v4, 1")
    k("s_lshl_b32 s55, s52, 2")
    k("v_mov_b32 v5, s55")
    k("s_mov_b64 exec, 1")
    k("buffer_atomic_add v4, v5, s[32:35], 0 offen sc0")
    k("s_waitcnt vmcnt(0)")
    k("v_mov_b32 v5, 0")
    k("ds_write_b32 v5, v4")
    k("s_mov_b64 exec, -1")
    k("s_waitcnt lgkmcnt(0)")
    k.label("L_%s_skipatom" % name)
    k("s_barrier")
    k("v_mov_b32 v5, 0")
    k("ds_read_b32 v4, v5")
    k("s_waitcnt lgkmcnt(0)")
    k("v_readfirstlane_b32 s55, v4")
    k("s_cmp_lg_u32 s55, 7")
    k("s_cbranch_scc1 L_%s_end" % name)
    k("buffer_inv sc1")
    k("s_lshl_b32 s55, s52, 16")
    k("s_add_u32 s55, s55, 0x%x" % Lw.WS_KVP)
    k("s_lshl_b32 s58, s36, 11")
    k("s_add_u32 s55, s55, s58")
    k("v_lshlrev_b32 v4, 2, v1")
    for c in range(8):
        for i in range(8):
            k("buffer_load_dword v%d, v4, s[28:31], s55 offen offset:%d sc0 sc1" % (acc + c * 8 + i, i * 256))
        k("s_add_u32 s55, s55, 8192")
    k("s_waitcnt vmcnt(0)")
    for c in range(1, 8):
        for i in range(8):
            k("v_add_f32 v%d, v%d, v%d" % (acc + i, acc + i, acc + c * 8 + i))
    k("s_lshr_b32 s58, s36, 1")
    k("s_and_b32 s59, s36, 1")
    k("s_lshl_b32 s58, s58, 6")
    k("s_lshl_b32 s59, s59, 3")
    k("s_add_u32 s58, s58, s59")
    k("s_lshl_b32 s59, s52, 12")
    k("s_add_u32 s58, s58, s59")
    k("s_add_u32 s58, s58, 0x%x" % Lw.WS_KVT)
    k("v_lshlrev_b32 v4, 7, v2")
    k("v_lshl_add_u32 v4, v3, 4, v4")
    for db in range(2):
        a = acc + db * 4
        k("v_cvt_pk_bf16_f32 v%d, v%d, v%d" % (T, a, a + 1))
        k("v_cvt_pk_bf16_f32 v%d, v%d, v%d" % (T + 1, a + 2, a + 3))
        k("buffer_store_dwordx2 v[%d:%d], v4, s[28:31], s58 offen offset:%d" % (T, T + 1, db * 2048))
    k.label("L_%s_end" % name)
    k("s_endpgm")
    return k, 132, 64, 32768


def k_o(name):
    k = Kern(name)
    P = attn_common(k, name)
    k("s_lshl_b32 s55, s52, 11")
    k("v_lshlrev_b32 v4, 6, v2")
    k("v_lshl_add_u32 v4, v3, 4, v4")
    k("s_add_u32 s55, s55, 0x%x" % Lw.WS_WPHIT)
    k("buffer_load_dwordx4 v[8:11], v4, s[28:31], s55 offen")
    k("buffer_load_dwordx4 v[12:15], v4, s[28:31], s55 offen offset:1024")
    k("s_lshl_b32 s55, s52, 12")
    k("s_add_u32 s55, s55, 0x%x" % Lw.WS_KVT)
    k("v_lshlrev_b32 v4, 7, v2")
    k("v_lshl_add_u32 v4, v3, 4, v4")
    for db in range(2):
        for ks in range(2):
            r = 16 + (db * 2 + ks) * 4
            k("buffer_load_dwordx4 v[%d:%d], v4, s[28:31], s55 offen offset:%d" % (r, r + 3, db * 2048 + ks * 64))
    k("v_cmp_eq_u32 s[56:57], 0, v3")
    k("v_lshlrev_b32 v5, 6, v2")
    k("v_lshl_add_u32 v5, v3, 4, v5")
    k("s_movk_i32 s58, 1152")
    k("v_mul_lo_u32 v6, v2, s58")
    k("v_lshl_add_u32 v6, v3, 3, v6")
    qf = 32; D0 = 36; D1 = 40; T = 44; pf = 64; N0 = 72; N1 = 76
    for u in range(4):
        k("s_lshl_b32 s55, s52, 11")
        k("s_add_u32 s55, s55, s53")
        k("s_add_u32 s55, s55, %d" % (16 * u))
        k("s_lshl_b32 s55, s55, 6")
        k("s_add_u32 s55, s55, 0x%x" % Lw.WS_Q)
        k("buffer_load_dwordx4 v[%d:%d], v5, s[28:31], s55 offen" % (qf, qf + 3))
        k("s_waitcnt vmcnt(0)")
        k("v_mfma_f32_16x16x32_bf16 v[%d:%d], v[8:11], v[%d:%d], 0" % (D0, D0 + 3, qf, qf + 3))
        k("v_mfma_f32_16x16x32_bf16 v[%d:%d], v[12:15], v[%d:%d], 0" % (D1, D1 + 3, qf, qf + 3))
        for r in range(4): bf16r(k, D0 + r)
        for r in range(2): bf16r(k, D1 + r)
        for sign in range(2):
            xs = [T + i for i in range(6)]
            m, s, t = T + 6, T + 7, T + 8
            for r in range(4):
                if sign == 0: k("v_mov_b32 v%d, v%d" % (xs[r], D0 + r))
                else: k("v_sub_f32 v%d, 0, v%d" % (xs[r], D0 + r))
            for r in range(2):
                if sign == 0: k("v_mov_b32 v%d, v%d" % (t, D1 + r))
                else: k("v_sub_f32 v%d, 0, v%d" % (t, D1 + r))
                k("v_mov_b32 v%d, 0x%x" % (xs[4 + r], NINF))
                k("v_cndmask_b32 v%d, v%d, v%d, s[56:57]" % (xs[4 + r], xs[4 + r], t))
            k("v_max3_f32 v%d, v%d, v%d, v%d" % (m, xs[0], xs[1], xs[2]))
            k("v_max3_f32 v%d, v%d, v%d, v%d" % (m, m, xs[3], xs[4]))
            k("v_max_f32 v%d, v%d, v%d" % (m, m, xs[5]))
            xg_reduce(k, m, t, "v_max_f32")
            for x in xs:
                k("v_sub_f32 v%d, v%d, v%d" % (x, x, m))
                k("v_mul_f32 v%d, 0x%x, v%d" % (x, LOG2E, x))
                k("v_exp_f32 v%d, v%d" % (x, x))
            k("v_add_f32 v%d, v%d, v%d" % (s, xs[0], xs[1]))
            for x in xs[2:]:
                k("v_add_f32 v%d, v%d, v%d" % (s, s, x))
            xg_reduce(k, s, t, "v_add_f32")
            k("v_rcp_f32 v%d, v%d" % (s, s))
            for x in xs:
                k("v_mul_f32 v%d, v%d, v%d" % (x, x, s))
            f = pf + sign * 4
            k("v_cvt_pk_bf16_f32 v%d, v%d, v%d" % (f, xs[0], xs[1]))
            k("v_cvt_pk_bf16_f32 v%d, v%d, v%d" % (f + 1, xs[2], xs[3]))
            k("v_cvt_pk_bf16_f32 v%d, v%d, v%d" % (f + 2, xs[4], xs[5]))
            k("v_mov_b32 v%d, 0" % (f + 3))
        for db, N in ((0, N0), (1, N1)):
            for ks in range(2):
                a = 16 + (db * 2 + ks) * 4
                b = pf + ks * 4
                c = ("v[%d:%d]" % (N, N + 3)) if ks else "0"
                k("v_mfma_f32_16x16x32_bf16 v[%d:%d], v[%d:%d], v[%d:%d], %s" % (N, N + 3, a, a + 3, b, b + 3, c))
        dn, t, rc, e = T, T + 1, T + 2, T + 3
        bf16r(k, N1 + 2)
        k("v_add_f32 v%d, 0x358637bd, v%d" % (N1 + 2, N1 + 2))
        bf16r(k, N1 + 2)
        k("v_mov_b32 v%d, 0x%x" % (dn, NINF))
        k("v_cndmask_b32 v%d, v%d, v%d, s[56:57]" % (dn, dn, N1 + 2))
        xg_reduce(k, dn, t, "v_max_f32")
        k("v_rcp_f32 v%d, v%d" % (rc, dn))
        for x in (N0, N0 + 1, N0 + 2, N0 + 3, N1, N1 + 1):
            bf16r(k, x)
            k("v_mul_f32 v%d, v%d, v%d" % (t, x, rc))
            k("v_fma_f32 v%d, -v%d, v%d, v%d" % (e, t, dn, x))
            k("v_fma_f32 v%d, v%d, v%d, v%d" % (x, e, rc, t))
        k("v_cvt_pk_bf16_f32 v%d, v%d, v%d" % (T + 4, N0, N0 + 1))
        k("v_cvt_pk_bf16_f32 v%d, v%d, v%d" % (T + 5, N0 + 2, N0 + 3))
        k("v_cvt_pk_bf16_f32 v%d, v%d, v%d" % (T + 6, N1, N1 + 1))
        k("s_add_u32 s55, s53, %d" % (16 * u))
        k("s_mul_i32 s55, s55, 1152")
        k("s_mul_i32 s58, s52, 36")
        k("s_add_u32 s55, s55, s58")
        k("s_add_u32 s55, s55, 0x%x" % Lw.WS_O)
        k("buffer_store_dwordx2 v[%d:%d], v6, s[28:31], s55 offen" % (T + 4, T + 5))
        k("s_mov_b64 exec, s[56:57]")
        k("buffer_store_dword v%d, v6, s[28:31], s55 offen offset:32" % (T + 6))
        k("s_mov_b64 exec, -1")
    k.label("L_%s_end" % name)
    k("s_endpgm")
    return k, 80, 64, 0
```

```python
from gemm import *

XBYTES = 2048 * 576 * 2

def k_hid(name):
    g = Gemm(name, 128, 96, 2, 2, 3, 192)
    k = g.k
    g.begin()
    P = g.P
    k("s_mov_b32 s50, 0x%x" % ((1 << 32) // 12 + 1))
    k("s_mul_hi_u32 s51, s2, s50")
    k("s_mul_i32 s52, s51, 12")
    k("s_sub_u32 s52, s2, s52")
    k("s_lshl_b32 s53, s51, 7")
    k("s_cmp_ge_u32 s52, 6")
    k("s_cselect_b32 s55, 1, 0")
    k("s_mul_i32 s56, s55, 6")
    k("s_sub_u32 s54, s52, s56")
    k("s_mul_i32 s54, s54, 96")
    k("s_waitcnt lgkmcnt(0)")
    srd(k, 28, P['WS'], Lw.WS_XN, XBYTES)
    k("s_cmp_ge_u32 s52, 6")
    k("s_cselect_b32 s32, s%d, s%d" % (P['WDI'], P['WDR']))
    k("s_cselect_b32 s33, s%d, s%d" % (P['WDI'] + 1, P['WDR'] + 1))
    k("s_and_b32 s33, s33, 0xffff")
    k("s_mov_b32 s34, %d" % (576 * 576 * 2))
    k("s_mov_b32 s35, 0x00020000")
    g.dma_offsets("s53", 1152, "s54", 1152)
    g.zero_acc()
    k("s_mov_b32 s47, 0"); k("s_mov_b32 s48, 0")
    g.mainloop(9, 28, 32, name)
    srd(k, 28, P['WS'], Lw.WS_ABT, 1152 * 2048 * 2)
    t = g.vfree
    k("s_mul_i32 s56, s52, 96")
    k("s_mul_i32 s57, s43, %d" % (g.TN * 16))
    k("s_add_u32 s56, s56, s57")
    k("s_mul_i32 s57, s42, %d" % (g.TM * 16))
    k("s_add_u32 s57, s57, s53")
    k("v_and_b32 v%d, 15, v1" % t)
    k("v_add_u32 v%d, s56, v%d" % (t, t))
    k("v_lshlrev_b32 v%d, 12, v%d" % (t, t))
    k("v_lshrrev_b32 v%d, 4, v1" % (t + 1))
    k("v_lshlrev_b32 v%d, 2, v%d" % (t + 1, t + 1))
    k("v_add_u32 v%d, s57, v%d" % (t + 1, t + 1))
    k("v_lshl_add_u32 v%d, v%d, 1, v%d" % (t, t + 1, t))
    for tb in range(g.TM):
        for tn in range(g.TN):
            c = g.accr(tb, tn)
            k("v_cvt_pk_bf16_f32 v%d, v%d, v%d" % (t + 2, c, c + 1))
            k("v_cvt_pk_bf16_f32 v%d, v%d, v%d" % (t + 3, c + 2, c + 3))
            k("s_mov_b32 s58, %d" % (tn * 16 * 4096))
            k("buffer_store_dwordx2 v[%d:%d], v%d, s[28:31], s58 offen offset:%d" % (t + 2, t + 3, t, tb * 32))
    g.end()
    return g.k, g.vfree + 8, 64, g.NS * g.STG


def resid_prefetch(g, srd_in, s_m0, s_n0, vx):
    k = g.k
    t = g.vfree
    k("s_mul_i32 s56, s42, %d" % (g.TM * 16))
    k("s_add_u32 s56, s56, %s" % s_m0)
    k("s_mul_i32 s57, s43, %d" % (g.TN * 16))
    k("s_add_u32 s57, s57, %s" % s_n0)
    k("v_lshrrev_b32 v%d, 4, v1" % t)
    k("v_lshlrev_b32 v%d, 2, v%d" % (t, t))
    k("v_add_u32 v%d, s56, v%d" % (t, t))
    k("s_movk_i32 s58, 576")
    k("v_mul_lo_u32 v%d, v%d, s58" % (t, t))
    k("v_and_b32 v%d, 15, v1" % (t + 1))
    k("v_add_u32 v%d, v%d, v%d" % (t, t, t + 1))
    k("v_add_u32 v%d, s57, v%d" % (t, t))
    k("v_lshlrev_b32 v%d, 1, v%d" % (vx - 1, t))
    i = 0
    for tb in range(g.TM):
        for r in range(4):
            k("s_mov_b32 s58, %d" % ((16 * tb + r) * 1152))
            for tn in range(g.TN):
                k("buffer_load_ushort v%d, v%d, s[%d:%d], s58 offen offset:%d" % (vx + (tb * g.TN + tn) * 4 + r, vx - 1, srd_in, srd_in + 3, tn * 32))


def resid_store(g, srd_out, vx, stash=None):
    k = g.k
    t = g.vfree
    for tb in range(g.TM):
        for tn in range(g.TN):
            c = g.accr(tb, tn)
            x = vx + (tb * g.TN + tn) * 4
            for r in range(4):
                k("v_cvt_pk_bf16_f32 v%d, v%d, v%d" % (t + r, c + r, c + r))
                k("v_lshlrev_b32 v%d, 16, v%d" % (t + r, t + r))
                if stash is not None:
                    st = stash + (tb * g.TN + tn) * 4 + r
                    k("v_sub_f32 v%d, v%d, v%d" % (t + r, st, t + r))
                    k("v_cvt_pk_bf16_f32 v%d, v%d, v%d" % (t + r, t + r, t + r))
                    k("v_lshlrev_b32 v%d, 16, v%d" % (t + r, t + r))
                k("v_lshlrev_b32 v%d, 16, v%d" % (x + r, x + r))
                k("v_add_f32 v%d, v%d, v%d" % (t + r, t + r, x + r))
                k("v_cvt_pk_bf16_f32 v%d, v%d, v%d" % (t + r, t + r, t + r))
            for r in range(4):
                k("s_mov_b32 s58, %d" % ((16 * tb + r) * 1152))
                k("buffer_store_short v%d, v%d, s[%d:%d], s58 offen offset:%d" % (t + r, vx - 1, srd_out, srd_out + 3, tn * 32))


def tile_32x6(k):
    k("s_and_b32 s50, s2, 7")
    k("s_lshr_b32 s51, s2, 3")
    k("s_and_b32 s59, s51, 3")
    k("s_lshl_b32 s50, s50, 2")
    k("s_add_u32 s50, s50, s59")
    k("s_lshr_b32 s52, s51, 2")
    k("s_mov_b32 s51, s50")


def k_seq(name, x_in, x_out):
    g = Gemm(name, 64, 96, 2, 2, 4, 192)
    k = g.k
    g.begin()
    P = g.P
    tile_32x6(k)
    k("s_lshl_b32 s53, s51, 6")
    k("s_mul_i32 s54, s52, 96")
    k("s_waitcnt lgkmcnt(0)")
    if x_in == 'A_x':
        srd(k, 60, P['A_x'], 0, XBYTES)
    else:
        srd(k, 60, P['WS'], x_in, XBYTES)
    stash = g.vfree + 4
    vx = stash + g.TM * g.TN * 4 + 1
    resid_prefetch(g, 60, "s53", "s54", vx)
    srd(k, 28, P['CR'], 0, 2048 * 2048 * 2)
    srd(k, 32, P['WS'], Lw.WS_ABT, 1152 * 2048 * 2)
    g.dma_offsets("s53", 4096, "s54", 4096)
    g.zero_acc()
    k("s_mov_b32 s47, 0"); k("s_mov_b32 s48, 0")
    g.mainloop(32, 28, 32, name + "_a")
    for i in range(g.TM * g.TN * 4):
        k("v_cvt_pk_bf16_f32 v%d, v%d, v%d" % (stash + i, g.acc + i, g.acc + i))
        k("v_lshlrev_b32 v%d, 16, v%d" % (stash + i, stash + i))
    g.zero_acc()
    k("s_barrier")
    srd(k, 28, P['CI'], 0, 2048 * 2048 * 2)
    k("s_mov_b32 s47, 0"); k("s_mov_b32 s48, %d" % (576 * 4096))
    g.mainloop(32, 28, 32, name + "_b")
    if x_out == 'OUT':
        srd(k, 60, P['OUT'], 0, XBYTES)
    else:
        srd(k, 60, P['WS'], x_out, XBYTES)
    resid_store(g, 60, vx, stash)
    g.end()
    return g.k, vx + g.TM * g.TN * 4 + 1, 72, g.NS * g.STG


def k_oproj(name, x_in, x_out):
    g = Gemm(name, 64, 96, 2, 2, 3, 192)
    k = g.k
    g.begin()
    P = g.P
    tile_32x6(k)
    k("s_lshl_b32 s53, s51, 6")
    k("s_mul_i32 s54, s52, 96")
    k("s_waitcnt lgkmcnt(0)")
    if x_in == 'A_x':
        srd(k, 60, P['A_x'], 0, XBYTES)
    else:
        srd(k, 60, P['WS'], x_in, XBYTES)
    vx = g.vfree + 5
    resid_prefetch(g, 60, "s53", "s54", vx)
    srd(k, 28, P['WS'], Lw.WS_O, XBYTES)
    srd(k, 32, P['WS'], Lw.WS_WOT, 576 * 576 * 2)
    g.dma_offsets("s53", 1152, "s54", 1152)
    g.zero_acc()
    k("s_mov_b32 s47, 0"); k("s_mov_b32 s48, 0")
    g.mainloop(9, 28, 32, name)
    srd(k, 60, P['WS'], x_out, XBYTES)
    resid_store(g, 60, vx)
    g.end()
    return g.k, vx + g.TM * g.TN * 4 + 1, 72, g.NS * g.STG
```

```python
S, D, H, DH = 2048, 576, 32, 18
def al(x, a=4096): return (x + a - 1) // a * a
_off = 0
def _take(n):
    global _off
    o = _off
    _off = al(_off + n)
    return o
WS_WQKVT = _take(1728 * 576 * 2)
WS_WOT   = _take(576 * 576 * 2)
WS_WPHIT = _take(32 * 32 * 32 * 2)
WS_XN    = _take(2048 * 576 * 2)
WS_Q     = _take(32 * 2048 * 32 * 2)
WS_K     = _take(32 * 2048 * 32 * 2)
WS_VT    = _take(32 * 32 * 2048 * 2)
WS_KVP   = _take(32 * 8 * 2048 * 4)
WS_KVT   = _take(32 * 32 * 64 * 2)
WS_O     = _take(2048 * 576 * 2)
WS_X1    = _take(2048 * 576 * 2)
WS_X2    = _take(2048 * 576 * 2)
WS_X3    = _take(2048 * 576 * 2)
WS_ABT   = _take(1152 * 2048 * 2)
WS_END   = _off
WS_SIZE  = 268435456
WS_SP    = _take(4 * 2048 * 576 * 4)
WS_END   = _off
```

```python
import sys
sys.path.insert(0, "dev")
from gen import *
from kern_b import *
from kern_a import *

def full():
    K = {}
    def add(kt):
        K[kt[0].name] = kt
        return kt[0].name
    L = []
    def launch(kt, grid):
        n = add(kt); L.append((n, grid, 256, kt[3] if len(kt) > 3 else 0))
    launch(k_prep(), 256)
    launch(k_ln("ln0_kernel", ('in', 'A_x')), 64)
    kq, kk, ko, kh = k_qkv("qkv_kernel"), k_kv("kv_kernel"), k_o("o_kernel"), k_hid("hid_kernel")
    launch(kq, 256); launch(kk, 256); launch(ko, 256)
    launch(k_oproj("op1_kernel", 'A_x', Lw.WS_X1), 192)
    launch(k_ln("ln1_kernel", ('ws', Lw.WS_X1)), 64)
    launch(kh, 192)
    launch(k_seq("seq1_kernel", Lw.WS_X1, Lw.WS_X2), 192)
    launch(k_ln("ln2_kernel", ('ws', Lw.WS_X2)), 64)
    launch(kq, 256); launch(kk, 256); launch(ko, 256)
    launch(k_oproj("op2_kernel", Lw.WS_X2, Lw.WS_X3), 192)
    launch(k_ln("ln3_kernel", ('ws', Lw.WS_X3)), 64)
    launch(kh, 192)
    launch(k_seq("seq2_kernel", Lw.WS_X3, 'OUT'), 192)
    kernels = [kt[:3] for kt in K.values()]
    return build(kernels, L)

if __name__ == "__main__":
    out = sys.argv[1] if len(sys.argv) > 1 else "out.s"
    open(out, "w").write(full())
```

```python
from asmlib import *
import layout as Lw
FLAGS = {}

class Gemm:
    def __init__(self, name, BM, BN, WM, WN, NS, nwg):
        self.k = Kern(name)
        self.name = name
        self.BM, self.BN, self.WM, self.WN, self.NS, self.nwg = BM, BN, WM, WN, NS, nwg
        assert WM * WN == 4
        self.TM, self.TN = BM // WM // 16, BN // WN // 16
        assert self.TM * WM * 16 == BM and self.TN * WN * 16 == BN
        assert BM % 32 == 0 and BN % 32 == 0
        self.DA, self.DB = BM // 32, BN // 32
        self.STG = (BM + BN) * 128
        v = 2
        self.vDA = v; v += self.DA
        self.vDB = v; v += self.DB
        self.vFA = v; v += 2
        self.vFB = v; v += 2
        self.vCA = v; v += 2
        self.vCB = v; v += 2
        v = (v + 3) // 4 * 4
        self.fA = v; v += self.TM * 4 * 2
        self.fB = v; v += self.TN * 4 * 2
        self.acc = v; v += self.TM * self.TN * 4
        self.vfree = v
        self.P = None

    def accr(self, tb, tn):
        return self.acc + (tb * self.TN + tn) * 4

    def begin(self):
        k = self.k
        k("s_cmp_ge_u32 s2, %d" % self.nwg)
        k("s_cbranch_scc1 L_%s_end" % self.name)
        self.P = load_kernargs(k, 4)
        k("v_lshrrev_b32 v1, 6, v0")
        k("s_nop 0")
        k("v_readfirstlane_b32 s36, v1")
        k("v_and_b32 v1, 63, v0")
        k("s_lshl_b32 s37, s36, 10")
        WM, WN, TM, TN, BM = self.WM, self.WN, self.TM, self.TN, self.BM
        t = self.vfree
        k("v_and_b32 v%d, 15, v1" % t)
        k("v_lshlrev_b32 v%d, 7, v%d" % (t, t))
        k("v_lshrrev_b32 v%d, 4, v1" % (t + 1))
        k("v_and_b32 v%d, 7, v1" % (t + 2))
        k("v_xor_b32 v%d, v%d, v%d" % (t + 1, t + 1, t + 2))
        k("v_lshl_add_u32 v%d, v%d, 4, v%d" % (t + 3, t + 1, t))
        k("v_xor_b32 v%d, 64, v%d" % (t + 4, t + 3))
        if WN == 1:
            k("s_mov_b32 s38, s36"); k("s_mov_b32 s39, 0")
        elif WN == 2:
            k("s_lshr_b32 s38, s36, 1"); k("s_and_b32 s39, s36, 1")
        else:
            k("s_mov_b32 s38, 0"); k("s_mov_b32 s39, s36")
        k("s_mul_i32 s40, s38, %d" % (TM * 2048))
        k("s_mul_i32 s41, s39, %d" % (TN * 2048))
        k("s_add_u32 s41, s41, %d" % (BM * 128))
        k("v_add_u32 v%d, s40, v%d" % (self.vFA, t + 3))
        k("v_add_u32 v%d, s40, v%d" % (self.vFA + 1, t + 4))
        k("v_add_u32 v%d, s41, v%d" % (self.vFB, t + 3))
        k("v_add_u32 v%d, s41, v%d" % (self.vFB + 1, t + 4))
        k("s_mov_b32 s42, s38"); k("s_mov_b32 s43, s39")

    def dma_offsets(self, s_m0, lda, s_n0, ldb, bmap=None):
        k = self.k
        t = self.vfree
        k("v_lshrrev_b32 v%d, 3, v1" % t)
        k("v_and_b32 v%d, 7, v1" % (t + 1))
        k("v_xor_b32 v%d, v%d, v%d" % (t + 1, t + 1, t))
        k("v_lshlrev_b32 v%d, 4, v%d" % (t + 1, t + 1))
        k("s_lshl_b32 s44, s36, 3")
        k("v_add_u32 v%d, s44, v%d" % (t, t))
        k("s_mov_b32 s45, %d" % lda)
        k("s_mov_b32 s46, %d" % ldb)
        for i in range(self.DA):
            k("v_add_u32 v%d, %d, v%d" % (t + 2, 32 * i, t))
            k("v_add_u32 v%d, %s, v%d" % (t + 2, s_m0, t + 2))
            k("v_mul_lo_u32 v%d, v%d, s45" % (t + 2, t + 2))
            k("v_add_u32 v%d, v%d, v%d" % (self.vDA + i, t + 2, t + 1))
        for i in range(self.DB):
            k("v_add_u32 v%d, %d, v%d" % (t + 2, 32 * i, t))
            if bmap is not None:
                bmap(k, t + 2)
            else:
                k("v_add_u32 v%d, %s, v%d" % (t + 2, s_n0, t + 2))
            k("v_mul_lo_u32 v%d, v%d, s46" % (t + 2, t + 2))
            k("v_add_u32 v%d, v%d, v%d" % (self.vDB + i, t + 2, t + 1))

    def zero_acc(self):
        for r in range(self.acc, self.acc + self.TM * self.TN * 4):
            self.k("v_mov_b32 v%d, 0" % r)

    def issue(self, buf, srdA, srdB, sKA="s47", sKB="s48"):
        k = self.k
        for i in range(self.DA):
            k("s_add_u32 m0, s37, %d" % (buf * self.STG + 4096 * i))
            if not FLAGS.get('nodma'): k("buffer_load_dwordx4 v%d, s[%d:%d], %s offen lds" % (self.vDA + i, srdA, srdA + 3, sKA))
        for i in range(self.DB):
            k("s_add_u32 m0, s37, %d" % (buf * self.STG + self.BM * 128 + 4096 * i))
            if not FLAGS.get('nodma'): k("buffer_load_dwordx4 v%d, s[%d:%d], %s offen lds" % (self.vDB + i, srdB, srdB + 3, sKB))
        k("s_add_u32 %s, %s, 128" % (sKA, sKA))
        k("s_add_u32 %s, %s, 128" % (sKB, sKB))

    def compute(self, buf):
        k = self.k
        TM, TN = self.TM, self.TN
        base = buf * self.STG
        if base:
            k("v_add_u32 v%d, %d, v%d" % (self.vCA, base, self.vFA))
            k("v_add_u32 v%d, %d, v%d" % (self.vCA + 1, base, self.vFA + 1))
            k("v_add_u32 v%d, %d, v%d" % (self.vCB, base, self.vFB))
            k("v_add_u32 v%d, %d, v%d" % (self.vCB + 1, base, self.vFB + 1))
            aA, aB = self.vCA, self.vCB
        else:
            aA, aB = self.vFA, self.vFB
        for j in range(2):
            for tb in range(TM):
                r = self.fA + (tb * 2 + j) * 4
                if not FLAGS.get('nodsr'): k("ds_read_b128 v[%d:%d], v%d offset:%d" % (r, r + 3, aA + j, tb * 2048))
            for tn in range(TN):
                r = self.fB + (tn * 2 + j) * 4
                if not FLAGS.get('nodsr'): k("ds_read_b128 v[%d:%d], v%d offset:%d" % (r, r + 3, aB + j, tn * 2048))
        for j in range(2):
            k("s_waitcnt lgkmcnt(%d)" % ((TM + TN) if j == 0 else 0))
            for tb in range(TM):
                for tn in range(TN):
                    a = self.fA + (tb * 2 + j) * 4
                    b = self.fB + (tn * 2 + j) * 4
                    c = self.accr(tb, tn)
                    if not FLAGS.get('nomfma'): k("v_mfma_f32_16x16x32_bf16 v[%d:%d], v[%d:%d], v[%d:%d], v[%d:%d]" % (c, c + 3, a, a + 3, b, b + 3, c, c + 3))

    def mainloop(self, T, srdA, srdB, tag):
        k = self.k
        NS = self.NS
        D = self.DA + self.DB
        assert (NS - 2) * D <= 63
        for s in range(NS - 1):
            self.issue(s, srdA, srdB)
        n_issue = T - (NS - 1)
        n_loop = n_issue // NS
        s = 0
        if n_loop > 0:
            k("s_mov_b32 s49, %d" % n_loop)
            k.label("L_%s_loop" % tag)
            for u in range(NS):
                k("s_waitcnt vmcnt(%d)" % ((NS - 2) * D))
                k("s_barrier")
                self.issue((u + NS - 1) % NS, srdA, srdB)
                self.compute(u)
            k("s_sub_u32 s49, s49, 1")
            k("s_cmp_lg_u32 s49, 0")
            k("s_cbranch_scc1 L_%s_loop" % tag)
            s = n_loop * NS
        while s < T:
            rem_after = min(s + NS - 2, T - 1) - s
            k("s_waitcnt vmcnt(%d)" % (rem_after * D))
            k("s_barrier")
            if s + NS - 1 < T:
                self.issue((s + NS - 1) % NS, srdA, srdB)
            self.compute(s % NS)
            s += 1

    def end(self):
        self.k.label("L_%s_end" % self.name)
        self.k("s_endpgm")
```

```python
from asmlib import *
import layout as Lw

class Gemm2:
    def __init__(self, name, BM, BN, WM, WN, NS, nwg):
        self.k = Kern(name)
        self.name = name
        self.BM, self.BN, self.WM, self.WN, self.NS, self.nwg = BM, BN, WM, WN, NS, nwg
        assert WM * WN == 4
        self.TM, self.TN = BM // WM // 16, BN // WN // 16
        assert self.TM * WM * 16 == BM and self.TN * WN * 16 == BN
        assert BM % 32 == 0
        self.BNP = (BN + 31) // 32 * 32
        self.DA, self.DB = BM // 32, self.BNP // 32
        self.STG = (BM + self.BNP) * 128
        v = 2
        self.vDA = v; v += self.DA
        self.vDB = v; v += self.DB
        self.vFA = v; v += 2
        self.vFB = v; v += 2
        self.vCA = v; v += 2
        self.vCB = v; v += 2
        v = (v + 3) // 4 * 4
        self.fA = v; v += self.TM * 4 * 2
        self.fB = v; v += self.TN * 4 * 2
        self.acc = v; v += self.TM * self.TN * 4
        self.vfree = v
        self.P = None

    def accr(self, tb, tn):
        return self.acc + (tb * self.TN + tn) * 4

    def begin(self):
        k = self.k
        k("s_cmp_ge_u32 s2, %d" % self.nwg)
        k("s_cbranch_scc1 L_%s_end" % self.name)
        self.P = load_kernargs(k, 4)
        k("v_lshrrev_b32 v1, 6, v0")
        k("s_nop 0")
        k("v_readfirstlane_b32 s36, v1")
        k("v_and_b32 v1, 63, v0")
        k("s_and_b32 s39, s36, 3")
        k("s_lshl_b32 s37, s39, 10")
        WM, WN = self.WM, self.WN
        if WN == 1:
            k("s_mov_b32 s42, s39"); k("s_mov_b32 s43, 0")
        elif WN == 2:
            k("s_lshr_b32 s42, s39, 1"); k("s_and_b32 s43, s39, 1")
        else:
            k("s_mov_b32 s42, 0"); k("s_mov_b32 s43, s39")

    def frag_addrs(self):
        k = self.k
        TM, TN, BM = self.TM, self.TN, self.BM
        t = self.vfree
        k("v_and_b32 v%d, 15, v1" % t)
        k("v_lshlrev_b32 v%d, 7, v%d" % (t, t))
        k("v_lshrrev_b32 v%d, 4, v1" % (t + 1))
        k("v_and_b32 v%d, 7, v1" % (t + 2))
        k("v_xor_b32 v%d, v%d, v%d" % (t + 1, t + 1, t + 2))
        k("v_lshl_add_u32 v%d, v%d, 4, v%d" % (t + 3, t + 1, t))
        k("v_xor_b32 v%d, 64, v%d" % (t + 4, t + 3))
        k("s_mul_i32 s40, s42, %d" % (TM * 2048))
        k("s_mul_i32 s41, s43, %d" % (TN * 2048))
        k("s_add_u32 s41, s41, %d" % (BM * 128))
        k("v_add_u32 v%d, s40, v%d" % (self.vFA, t + 3))
        k("v_add_u32 v%d, s40, v%d" % (self.vFA + 1, t + 4))
        k("v_add_u32 v%d, s41, v%d" % (self.vFB, t + 3))
        k("v_add_u32 v%d, s41, v%d" % (self.vFB + 1, t + 4))

    def dma_offsets(self, s_m0, lda, s_n0, ldb, bmap=None):
        k = self.k
        t = self.vfree
        k("v_lshrrev_b32 v%d, 3, v1" % t)
        k("v_and_b32 v%d, 7, v1" % (t + 1))
        k("v_xor_b32 v%d, v%d, v%d" % (t + 1, t + 1, t))
        k("v_lshlrev_b32 v%d, 4, v%d" % (t + 1, t + 1))
        k("s_lshl_b32 s44, s39, 3")
        k("v_add_u32 v%d, s44, v%d" % (t, t))
        k("s_mov_b32 s45, %d" % lda)
        k("s_mov_b32 s46, %d" % ldb)
        for i in range(self.DA):
            k("v_add_u32 v%d, %d, v%d" % (t + 2, 32 * i, t))
            k("v_add_u32 v%d, %s, v%d" % (t + 2, s_m0, t + 2))
            k("v_mul_lo_u32 v%d, v%d, s45" % (t + 2, t + 2))
            k("v_add_u32 v%d, v%d, v%d" % (self.vDA + i, t + 2, t + 1))
        for i in range(self.DB):
            k("v_add_u32 v%d, %d, v%d" % (t + 2, 32 * i, t))
            if self.BNP != self.BN:
                k("v_min_u32 v%d, %d, v%d" % (t + 2, self.BN - 1, t + 2))
            if bmap is not None:
                bmap(k, t + 2)
            else:
                k("v_add_u32 v%d, %s, v%d" % (t + 2, s_n0, t + 2))
            k("v_mul_lo_u32 v%d, v%d, s46" % (t + 2, t + 2))
            k("v_add_u32 v%d, v%d, v%d" % (self.vDB + i, t + 2, t + 1))

    def zero_acc(self):
        for r in range(self.acc, self.acc + self.TM * self.TN * 4):
            self.k("v_mov_b32 v%d, 0" % r)

    def issue(self, buf, srdA, srdB):
        k = self.k
        for i in range(self.DA):
            k("s_add_u32 m0, s37, %d" % (buf * self.STG + 4096 * i))
            k("buffer_load_dwordx4 v%d, s[%d:%d], s47 offen lds" % (self.vDA + i, srdA, srdA + 3))
        for i in range(self.DB):
            k("s_add_u32 m0, s37, %d" % (buf * self.STG + self.BM * 128 + 4096 * i))
            k("buffer_load_dwordx4 v%d, s[%d:%d], s48 offen lds" % (self.vDB + i, srdB, srdB + 3))
        k("s_add_u32 s47, s47, 128")
        k("s_add_u32 s48, s48, 128")

    def compute(self, buf):
        k = self.k
        TM, TN = self.TM, self.TN
        base = buf * self.STG
        if base:
            k("v_add_u32 v%d, %d, v%d" % (self.vCA, base, self.vFA))
            k("v_add_u32 v%d, %d, v%d" % (self.vCA + 1, base, self.vFA + 1))
            k("v_add_u32 v%d, %d, v%d" % (self.vCB, base, self.vFB))
            k("v_add_u32 v%d, %d, v%d" % (self.vCB + 1, base, self.vFB + 1))
            aA, aB = self.vCA, self.vCB
        else:
            aA, aB = self.vFA, self.vFB
        reads = []
        for j in range(2):
            for tb in range(TM):
                r = self.fA + (tb * 2 + j) * 4
                reads.append("ds_read_b128 v[%d:%d], v%d offset:%d" % (r, r + 3, aA + j, tb * 2048))
            for tn in range(TN):
                r = self.fB + (tn * 2 + j) * 4
                reads.append("ds_read_b128 v[%d:%d], v%d offset:%d" % (r, r + 3, aB + j, tn * 2048))
        n = TM + TN
        for rd in reads: k(rd)
        for j in range(2):
            k("s_waitcnt lgkmcnt(%d)" % (n if j == 0 else 0))
            for tb in range(TM):
                for tn in range(TN):
                    a = self.fA + (tb * 2 + j) * 4
                    b = self.fB + (tn * 2 + j) * 4
                    c = self.accr(tb, tn)
                    k("v_mfma_f32_16x16x32_bf16 v[%d:%d], v[%d:%d], v[%d:%d], v[%d:%d]" % (c, c + 3, a, a + 3, b, b + 3, c, c + 3))

    def _loop(self, T, body, tag):
        k = self.k
        NS = self.NS
        n_issue = T - (NS - 1)
        n_loop = n_issue // NS
        s = 0
        if n_loop > 1:
            k("s_mov_b32 s49, %d" % n_loop)
            k.label("L_%s_loop" % tag)
            for u in range(NS):
                body(u, None)
            k("s_sub_u32 s49, s49, 1")
            k("s_cmp_lg_u32 s49, 0")
            k("s_cbranch_scc1 L_%s_loop" % tag)
            s = n_loop * NS
        while s < T:
            body(s % NS, s)
            s += 1

    def loader_loop(self, T, srdA, srdB, tag):
        k = self.k
        NS = self.NS
        D = self.DA + self.DB
        assert (NS - 2) * D <= 63
        for s in range(NS - 1):
            self.issue(s, srdA, srdB)
        def body(u, s):
            if s is None:
                k("s_waitcnt vmcnt(%d)" % ((NS - 2) * D))
                k("s_barrier")
                self.issue((u + NS - 1) % NS, srdA, srdB)
            else:
                rem_after = min(s + NS - 2, T - 1) - s
                k("s_waitcnt vmcnt(%d)" % (rem_after * D))
                k("s_barrier")
                if s + NS - 1 < T:
                    self.issue((s + NS - 1) % NS, srdA, srdB)
        self._loop(T, body, tag + "_ld")

    def consumer_loop(self, T, tag):
        k = self.k
        def body(u, s):
            k("s_barrier")
            self.compute(u)
        self._loop(T, body, tag + "_cp")

    def end(self):
        self.k.label("L_%s_end" % self.name)
        self.k("s_endpgm")
```

```python
from gemm2 import *
from gen import emit_ln
XBYTES = 2048 * 576 * 2

def k_seq2(name):
    g = Gemm2(name, 128, 144, 4, 1, 3, 256)
    k = g.k
    g.begin()
    P = g.P
    k("s_and_b32 s50, s2, 7")
    k("s_lshr_b32 s51, s2, 3")
    k("s_and_b32 s52, s51, 1")
    k("s_lshl_b32 s50, s50, 1")
    k("s_add_u32 s50, s50, s52")
    k("s_lshr_b32 s52, s51, 1")
    k("s_and_b32 s52, s52, 3")
    k("s_lshr_b32 s55, s51, 3")
    k("s_lshl_b32 s53, s50, 7")
    k("s_mul_i32 s54, s52, 144")
    k("s_waitcnt lgkmcnt(0)")
    k("s_cmp_ge_u32 s36, 4")
    k("s_cbranch_scc1 L_%s_loader" % name)
    g.frag_addrs()
    g.zero_acc()
    g.consumer_loop(16, name)
    srd(k, 28, P['WS'], Lw.WS_SP, 4 * 2048 * 576 * 4)
    t = g.vfree
    k("s_mul_i32 s56, s42, 32")
    k("s_add_u32 s56, s56, s53")
    k("v_lshrrev_b32 v%d, 4, v1" % t)
    k("v_lshlrev_b32 v%d, 2, v%d" % (t, t))
    k("v_add_u32 v%d, s56, v%d" % (t, t))
    k("s_movk_i32 s58, 576")
    k("v_mul_lo_u32 v%d, v%d, s58" % (t, t))
    k("v_and_b32 v%d, 15, v1" % (t + 1))
    k("v_add_u32 v%d, v%d, v%d" % (t, t, t + 1))
    k("v_add_u32 v%d, s54, v%d" % (t, t))
    k("v_lshlrev_b32 v%d, 2, v%d" % (t, t))
    k("s_mul_i32 s57, s55, %d" % (2048 * 576 * 4))
    for tb in range(g.TM):
        for r in range(4):
            k("s_add_u32 s58, s57, %d" % ((16 * tb + r) * 2304))
            for tn in range(g.TN):
                k("buffer_store_dword v%d, v%d, s[28:31], s58 offen offset:%d" % (g.accr(tb, tn) + r, t, tn * 64))
    k("s_branch L_%s_end" % name)
    k.label("L_%s_loader" % name)
    k("s_cmp_ge_u32 s55, 2")
    k("s_cselect_b32 s28, s%d, s%d" % (P['CI'], P['CR']))
    k("s_cselect_b32 s29, s%d, s%d" % (P['CI'] + 1, P['CR'] + 1))
    k("s_and_b32 s29, s29, 0xffff")
    k("s_mov_b32 s30, %d" % (2048 * 2048 * 2))
    k("s_mov_b32 s31, 0x00020000")
    srd(k, 32, P['WS'], Lw.WS_ABT, 1152 * 2048 * 2)
    g.dma_offsets("s53", 4096, "s54", 4096)
    k("s_and_b32 s56, s55, 1")
    k("s_lshl_b32 s47, s56, 11")
    k("s_lshr_b32 s57, s55, 1")
    k("s_mul_i32 s48, s57, %d" % (576 * 4096))
    k("s_add_u32 s48, s48, s47")
    g.loader_loop(16, 28, 32, name)
    g.end()
    return g.k, g.vfree + 8, 64, g.NS * g.STG


def k_post(name, x_in, x_out, do_ln=True):
    k = Kern(name)
    k("s_cmp_ge_u32 s2, 256")
    k("s_cbranch_scc1 L_%s_end" % name)
    P = load_kernargs(k, 4)
    k("s_lshl_b32 s28, s2, 3")
    k("v_lshrrev_b32 v3, 3, v0")
    k("v_add_u32 v3, s28, v3")
    k("v_and_b32 v4, 7, v0")
    k("s_movk_i32 s29, 1152")
    k("v_mul_lo_u32 v5, v3, s29")
    k("v_lshl_add_u32 v5, v4, 4, v5")
    k("v_lshlrev_b32 v6, 1, v5")
    k("s_waitcnt lgkmcnt(0)")
    if x_in == 'A_x': srd(k, 32, P['A_x'], 0, XBYTES)
    else: srd(k, 32, P['WS'], x_in, XBYTES)
    if x_out == 'OUT': srd(k, 36, P['OUT'], 0, XBYTES)
    else: srd(k, 36, P['WS'], x_out, XBYTES)
    srd(k, 40, P['WS'], Lw.WS_SP, 4 * 2048 * 576 * 4)
    srd(k, 44, P['WS'], Lw.WS_XN, XBYTES)
    X = 8
    Pb = 48
    for i in range(9):
        k("buffer_load_dwordx4 v[%d:%d], v5, s[32:35], 0 offen offset:%d" % (X + 4 * i, X + 4 * i + 3, 128 * i))
    for b in range(3):
        for ii in range(3):
            i = b * 3 + ii
            for q in range(4):
                k("s_mov_b32 s48, %d" % (q * 2048 * 576 * 4))
                for hh in range(2):
                    r = Pb + ii * 32 + q * 8 + hh * 4
                    k("buffer_load_dwordx4 v[%d:%d], v6, s[40:43], s48 offen offset:%d" % (r, r + 3, 256 * i + 16 * hh))
        for ii in range(3):
            i = b * 3 + ii
            k("s_waitcnt vmcnt(%d)" % ((2 - ii) * 8))
            for e in range(8):
                a = Pb + ii * 32 + e
                k("v_add_f32 v%d, v%d, v%d" % (a, a, a + 8))
                k("v_add_f32 v%d, v%d, v%d" % (a + 16, a + 16, a + 24))
                k("v_cvt_pk_bf16_f32 v%d, v%d, v%d" % (a, a, a + 16))
                k("v_lshlrev_b32 v%d, 16, v%d" % (a + 8, a))
                k("v_and_b32 v%d, 0xffff0000, v%d" % (a + 16, a))
                k("v_sub_f32 v%d, v%d, v%d" % (a, a + 8, a + 16))
                k("v_cvt_pk_bf16_f32 v%d, v%d, v%d" % (a, a, a))
                k("v_lshlrev_b32 v%d, 16, v%d" % (a, a))
                xr = X + 4 * i + e // 2
                if e % 2 == 0: k("v_lshlrev_b32 v%d, 16, v%d" % (a + 8, xr))
                else: k("v_and_b32 v%d, 0xffff0000, v%d" % (a + 8, xr))
                k("v_add_f32 v%d, v%d, v%d" % (a, a, a + 8))
            for e2 in range(4):
                k("v_cvt_pk_bf16_f32 v%d, v%d, v%d" % (X + 4 * i + e2, Pb + ii * 32 + 2 * e2, Pb + ii * 32 + 2 * e2 + 1))
    for i in range(9):
        k("buffer_store_dwordx4 v[%d:%d], v5, s[36:39], 0 offen offset:%d" % (X + 4 * i, X + 4 * i + 3, 128 * i))
    if do_ln:
        k("s_waitcnt vmcnt(0)")
        emit_ln(k, 5, 36, "0", 44, "0", 8)
    k.label("L_%s_end" % name)
    k("s_endpgm")
    return k, 144, 64, 0
```

```python
import sys
sys.path.insert(0, "dev")
from gen import *
from kern_b import *
from kern_a import *
from kern_c import *

def full():
    K = {}
    def add(kt):
        K[kt[0].name] = kt
        return kt[0].name
    L = []
    def launch(kt, grid):
        n = add(kt); L.append((n, grid, 512 if n == 'seq_kernel' else 256, kt[3] if len(kt) > 3 else 0))
    launch(k_prep(), 256)
    n = add(k_ln("ln0_kernel", ('in', 'A_x'))); L.append((n, 256, 64, 0))
    kq, kk, ko, kh = k_qkv("qkv_kernel"), k_kv("kv_kernel"), k_o("o_kernel"), k_hid("hid_kernel")
    launch(kq, 256); launch(kk, 256); launch(ko, 256)
    launch(k_oproj("op1_kernel", 'A_x', Lw.WS_X1), 192)
    n = add(k_ln("ln1_kernel", ('ws', Lw.WS_X1))); L.append((n, 256, 64, 0))
    launch(kh, 192)
    ksq = k_seq2("seq_kernel")
    launch(ksq, 256)
    n = add(k_post("post1_kernel", Lw.WS_X1, Lw.WS_X2)); L.append((n, 256, 64, 0))
    launch(kq, 256); launch(kk, 256); launch(ko, 256)
    launch(k_oproj("op2_kernel", Lw.WS_X2, Lw.WS_X3), 192)
    n = add(k_ln("ln3_kernel", ('ws', Lw.WS_X3))); L.append((n, 256, 64, 0))
    launch(kh, 192)
    launch(ksq, 256)
    n = add(k_post("post2_kernel", Lw.WS_X3, 'OUT', False)); L.append((n, 256, 64, 0))
    kernels = [kt[:3] for kt in K.values()]
    return build(kernels, L)

if __name__ == "__main__":
    out = sys.argv[1] if len(sys.argv) > 1 else "out.s"
    open(out, "w").write(full())
```
